```python
import torch

def _softmax(x, axis=-1):
    return torch.softmax(x, dim=axis)
def _gelu(x):
    return torch.nn.functional.gelu(x, approximate="tanh")
def _silu(x):
    return torch.nn.functional.silu(x)
def _sigmoid(x):
    return torch.sigmoid(x)
def _layernorm(x, axis=-1, eps=1e-5):
    m = x.mean(dim=axis, keepdim=True)
    v = x.var(dim=axis, keepdim=True, unbiased=False)
    return (x - m) / torch.sqrt(v + eps)
def _scatter_add(tgt, idx, src, axis=0):
    return tgt.clone().index_add_(axis, idx, src)
def _segment_sum(src, seg, n):
    out = torch.zeros((n,) + src.shape[1:], dtype=src.dtype)
    return out.index_add_(0, seg, src)
def _pad(x, pw):
    flat = tuple(v for pair in reversed(pw) for v in pair)
    return torch.nn.functional.pad(x, flat)

kernel_name = 'standalone__gqa_softmax__near_ridge'

def setup_inputs():

    _w = (lambda a: (lambda t: t.to(torch.bfloat16) if t.is_floating_point() else t)(torch.as_tensor(a)))
    B, Hq, Hkv, Sq, Sk, D = 64, 32, 32, 256, 256, 128
    return {
        "q": _w((lambda *s: torch.randn(*s, dtype=torch.bfloat16) * 0.8)(B, Hq, Sq, D)),
        "k": _w((lambda *s: torch.randn(*s, dtype=torch.bfloat16) * 0.8)(B, Hkv, Sk, D)),
        "v": _w((lambda *s: torch.randn(*s, dtype=torch.bfloat16) * 0.05)(B, Hkv, Sk, D)),
    }

def reference(q, k, v):
    B, Hq, Sq, D = q.shape
    Hkv = k.shape[1]
    rep = Hq // Hkv
    k = (lambda x, n, axis: torch.repeat_interleave(x, n, dim=axis))(k, rep, axis=1)
    v = (lambda x, n, axis: torch.repeat_interleave(x, n, dim=axis))(v, rep, axis=1)
    scale = D ** -0.5
    scores = torch.einsum("bhqd,bhkd->bhqk", q, k) * scale
    p = _softmax(scores, axis=-1)
    return torch.einsum("bhqk,bhkd->bhqd", p, v)
```

```python
class Ins:
    def __init__(self, text, kind, vdst=(), vsrc=(), srcc=(), sdst=(), ssrc=(), tag=None):
        self.text = text
        self.kind = kind
        self.vdst = set(vdst)
        self.vsrc = set(vsrc)
        self.srcc = set(srcc)
        self.sdst = set(sdst)
        self.ssrc = set(ssrc)
        self.tag = tag
        self.val = None

    def __repr__(self):
        return f"<{self.kind}: {self.text}>"


def R(base, n):
    return list(range(base, base + n))


def vr(base, n=1):
    return f"v{base}" if n == 1 else f"v[{base}:{base + n - 1}]"


def sr(base, n=1):
    return f"s{base}" if n == 1 else f"s[{base}:{base + n - 1}]"


VALU_KINDS = ("valu", "trans", "perm", "rfl")
LDS_KINDS = ("dsr", "dsw")
VMEM_KINDS = ("vload", "vstore", "dma")


class Prog:
    def __init__(self):
        self.ins = []

    def add(self, i):
        self.ins.append(i)
        return i

    def extend(self, l):
        for i in l:
            self.add(i)

    def raw(self, text, kind="salu", **kw):
        return self.add(Ins(text, kind, **kw))


def salu(text, sdst=(), ssrc=()):
    return Ins(text, "salu", sdst=sdst, ssrc=ssrc)


def label(name):
    return Ins(name + ":", "label")


def nop(n=1):
    assert 1 <= n <= 16
    return Ins(f"s_nop {n - 1}", "nop", tag=n)


def barrier():
    return Ins("s_barrier", "bar")


def valu(op, d, *srcs, mods="", kind="valu", sdst=(), dn=1):
    ops = []
    vs = []
    ss = []
    for s in srcs:
        if isinstance(s, int):
            ops.append(vr(s))
            vs.append(s)
        elif isinstance(s, tuple):
            ops.append(vr(s[0], s[1]))
            vs += R(s[0], s[1])
        else:
            ops.append(s)
            if s.startswith("s") and s[1:].isdigit():
                ss.append(int(s[1:]))
    text = f"{op} {vr(d, dn)}, " + ", ".join(ops) + (" " + mods if mods else "")
    vd = R(d, dn)
    if op.startswith("v_fmac") or op.startswith("v_dot2c"):
        vs += vd
    return Ins(text, kind, vdst=vd, vsrc=vs, ssrc=ss, sdst=sdst)


def trans(op, d, s):
    return valu(op, d, s, kind="trans")


def mfma(d, a, b, c_zero):
    c = "0" if c_zero else vr(d, 16)
    text = f"v_mfma_f32_32x32x16_bf16 {vr(d, 16)}, {vr(a, 4)}, {vr(b, 4)}, {c}"
    return Ins(text, "mfma", vdst=R(d, 16), vsrc=R(a, 4) + R(b, 4),
               srcc=() if c_zero else R(d, 16))


def ds_read(op, d, n, addr, off):
    assert 0 <= off < 65536
    return Ins(f"{op} {vr(d, n)}, {vr(addr)} offset:{off}", "dsr", vdst=R(d, n), vsrc=[addr])


def ds_write(op, addr, s, n, off):
    assert 0 <= off < 65536
    return Ins(f"{op} {vr(addr)}, {vr(s, n)} offset:{off}", "dsw", vsrc=[addr] + R(s, n))


def dma(voff, srd, soff, off, flags="", tag=None):
    assert 0 <= off < 4096
    o = f" offset:{off}" if off else ""
    f = f" {flags}" if flags else ""
    return Ins(f"buffer_load_dwordx4 {vr(voff)}, {sr(srd, 4)}, {soff} offen{o}{f} lds", "dma",
               vsrc=[voff], tag=tag)


def vstore(s, voff, srd, soff, off, flags="", tag=None):
    assert 0 <= off < 4096
    o = f" offset:{off}" if off else ""
    f = f" {flags}" if flags else ""
    return Ins(f"buffer_store_dwordx4 {vr(s, 4)}, {vr(voff)}, {sr(srd, 4)}, {soff} offen{o}{f}",
               "vstore", vsrc=[voff] + R(s, 4), tag=tag)


def vload(d, n, voff, srd, soff, off, flags="", tag=None):
    assert 0 <= off < 4096
    o = f" offset:{off}" if off else ""
    f = f" {flags}" if flags else ""
    op = {1: "buffer_load_dword", 2: "buffer_load_dwordx2", 4: "buffer_load_dwordx4"}[n]
    return Ins(f"{op} {vr(d, n)}, {vr(voff)}, {sr(srd, 4)}, {soff} offen{o}{f}", "vload",
               vdst=R(d, n), vsrc=[voff], tag=tag)


def waitvm(tag, lgkm0=False):
    i = Ins("s_waitcnt vmcnt(?)", "waitvm", tag=tag)
    i.lgkm0 = lgkm0
    return i


def waitlgkm(n):
    i = Ins(f"s_waitcnt lgkmcnt({n})", "waitlgkm")
    i.val = n
    return i


def split_loop(ins, loop_label):
    for k, i in enumerate(ins):
        if i.kind == "label" and i.text == loop_label + ":":
            start = k
    for k, i in enumerate(ins):
        if i.kind == "branch" and i.tag == loop_label:
            end = k
    return start, end


def insert_lgkm_waits(ins, loop=None, reg_loads_vm=True):
    out = []
    pending = []
    for i in ins:
        if i.kind == "label" or i.kind == "branch":
            if any(p for p in pending):
                live = [p for p in pending if p]
                if live:
                    raise RuntimeError(f"ds_read results outstanding at {i.text}: {live}")
        if i.kind == "waitlgkm":
            pending = pending[len(pending) - i.val:] if i.val < len(pending) else pending
            if i.val == 0:
                pending = []
        if i.kind == "waitvm" and getattr(i, "lgkm0", False):
            pending = []
        touched = i.vsrc | i.srcc | i.vdst
        need = None
        for k, p in enumerate(pending):
            if p & touched:
                need = k
        if need is not None:
            n = len(pending) - need - 1
            assert n <= 15, f"lgkmcnt overflow {n} at {i.text}"
            w = waitlgkm(n)
            out.append(w)
            pending = pending[need + 1:]
        if i.kind in LDS_KINDS:
            pending.append(set(i.vdst) if i.kind == "dsr" else set())
        out.append(i)
    return out


def resolve_vm_waits(ins, loop_label):
    s, e = split_loop(ins, loop_label)
    seq = ins[:e + 1] + ins[s:e + 1] + ins[s:]
    ops = []
    vals = {}
    for i in seq:
        if i.kind in VMEM_KINDS:
            ops.append(i.tag)
        elif i.kind == "waitvm":
            tags = i.tag if isinstance(i.tag, (list, tuple)) else [i.tag]
            last = -1
            for k in range(len(ops) - 1, -1, -1):
                if ops[k] in tags:
                    last = k
                    break
            if i.tag == "ALL":
                n = 0
            else:
                assert last >= 0, f"waitvm tag {i.tag} never issued"
                n = len(ops) - 1 - last
            vals.setdefault(id(i), []).append(n)
    for i in ins:
        if i.kind == "waitvm":
            v = vals[id(i)]
            i.val = min(v)
            assert i.val <= 63
            i.allvals = v
            t = f"s_waitcnt vmcnt({i.val})"
            if i.lgkm0:
                t += " lgkmcnt(0)"
            i.text = t
    return ins


def _states(i):
    if i.kind == "nop":
        return i.tag
    if i.kind == "label":
        return 0
    return 1


def required_gap(p, c):
    need = 0
    c_reads = c.vsrc | c.srcc
    if p.kind in VALU_KINDS:
        if c.kind == "mfma" and (p.vdst & c_reads):
            need = max(need, 2)
        if c.kind == "perm" and (p.vdst & (c.vsrc | c.vdst)):
            need = max(need, 2)
        if c.kind == "rfl" and (p.vdst & c.vsrc):
            need = max(need, 1)
        if p.kind == "trans" and c.kind != "trans" and (p.vdst & c_reads):
            need = max(need, 1)
        if p.sdst:
            if c.kind in VMEM_KINDS and (p.sdst & c.ssrc):
                need = max(need, 5)
            if c.kind in VALU_KINDS and (p.sdst & c.ssrc):
                need = max(need, 2)
    if p.kind == "mfma":
        if c.kind == "mfma":
            if p.vdst & c.vsrc:
                need = max(need, 12)
            if p.vdst & c.srcc:
                if c.srcc != p.vdst:
                    need = max(need, 10)
            elif p.vdst & c.vdst:
                if c.vdst != p.vdst or not c.srcc:
                    need = max(need, 12)
        elif c.kind in VALU_KINDS or c.kind in LDS_KINDS or c.kind in VMEM_KINDS:
            if p.vdst & (c.vsrc | c.vdst):
                need = max(need, 12)
            if c.kind in VALU_KINDS and (p.srcc & c.vdst):
                need = max(need, 7)
    if p.kind == "vstore":
        data = p.vsrc
        if c.vdst & data:
            need = max(need, 2)
    if p.kind == "salu" and "m0" in p.sdst and c.kind == "dma":
        need = max(need, 1)
    return need


def fix_hazards(ins, loop_label, verbose=True, window=24):
    inserted = 0
    changed = True
    while changed:
        changed = False
        s, e = split_loop(ins, loop_label)
        seq = list(range(0, e + 1)) + list(range(s, e + 1))
        for pos in range(len(seq)):
            c = ins[seq[pos]]
            if c.kind in ("label", "nop", "salu", "bar", "waitvm", "waitlgkm", "branch"):
                continue
            dist = 0
            for q in range(pos - 1, max(-1, pos - 1 - window), -1):
                p = ins[seq[q]]
                need = required_gap(p, c)
                if need > dist:
                    k = need - dist
                    if verbose:
                        print(f"  hazard: {p.text}  ->  {c.text}: need {need}, have {dist}; +nop {k}")
                    ins.insert(seq[pos], nop(k))
                    inserted += k
                    changed = True
                    break
                dist += _states(p)
                if dist >= 18:
                    break
            if changed:
                break
        if not changed:
            seq = list(range(s, len(ins)))
            for pos in range(len(seq)):
                c = ins[seq[pos]]
                if seq[pos] <= e:
                    continue
                if c.kind in ("label", "nop", "salu", "bar", "waitvm", "waitlgkm", "branch"):
                    continue
                dist = 0
                for q in range(pos - 1, max(-1, pos - 1 - window), -1):
                    p = ins[seq[q]]
                    need = required_gap(p, c)
                    if need > dist:
                        ins.insert(seq[pos], nop(need - dist))
                        inserted += need - dist
                        changed = True
                        break
                    dist += _states(p)
                    if dist >= 18:
                        break
                if changed:
                    break
    return ins, inserted


def render(ins):
    out = []
    for i in ins:
        if i.kind == "label":
            out.append(i.text)
        else:
            out.append("    " + i.text)
    return "\n".join(out)
```

```python
import math
import struct
import sys
from asmlib import *

NAME = "standalone__gqa_softmax__near_ridge"

DEFAULTS = dict(
    LA=4,
    XB=2,
    LDFLAGS="",
    STFLAGS="",
    NWG=256,
    PKMUL=0,
    COMPUTE=1,
    PRIO=0,
)

S = 0
O = 128
Q = 128
F = 192
NF = 8
KA = 224
VA = 232
DKQ0, DKQ1, DV = 236, 237, 238
STW, STR, STO = 239, 240, 241
MA, MB, NMC, L0, L1 = 242, 243, 244, 245, 246
INV = 247
T0 = 248

SRD_Q, SRD_K, SRD_V, SRD_O = 4, 8, 12, 16
S_CUR, S_NXT, S_HP, S_HQ, S_QD, S_IT, S_C, S_T0, S_T1, S_SZ, S_W = 20, 21, 22, 23, 24, 25, 26, 27, 28, 29, 30
S_NC, S_W16, S_CUR2 = 31, 32, 33

TILE = 16384
HEAD = 65536
TENSOR_BYTES = 64 * 32 * 256 * 128 * 2


def f32hex(x):
    return "0x%08x" % struct.unpack("<I", struct.pack("<f", x))[0]


def dma_tile(p, tensor, j, nxt, tag):
    srd = {"Q": SRD_Q, "K": SRD_K, "V": SRD_V}[tensor]
    head = S_NXT if nxt else S_CUR
    same = (tensor in "QV")
    half = (S_HP if same else S_HQ) if not nxt else (S_HQ if same else S_HP)
    v0, v1 = (DV, DV) if tensor == "V" else (DKQ0, DKQ1)
    a = []
    if j:
        a.append(salu(f"s_add_u32 m0, s{half}, {j * TILE}", sdst=["m0"]))
        a.append(salu(f"s_add_u32 s{S_T0}, s{head}, {j * TILE}"))
        so = f"s{S_T0}"
    else:
        a.append(salu(f"s_mov_b32 m0, s{half}", sdst=["m0"]))
        so = f"s{head}"
    fl = p["LDFLAGS"]
    first = a + [dma(v0, srd, so, 0, fl, tag=tag)]
    second = [dma(v1, srd, so, 1024, fl, tag=tag)]
    return [first, second]


def frag_read(n):
    f = F + 4 * (n % NF)
    if n < 64:
        t, s = divmod(n, 8)
        j, kt = divmod(t, 2)
        return [ds_read("ds_read_b128", f, 4, KA + s, j * TILE + kt * 8192)]
    m = n - 64
    kap, dt = divmod(m, 4)
    j, ks = divmod(kap, 4)
    off = j * TILE + ks * 4096
    return [ds_read("ds_read_b64_tr_b16", f, 2, VA + dt, off),
            ds_read("ds_read_b64_tr_b16", f + 2, 2, VA + dt, off + 2048)]


def slot_mfma(n):
    f = F + 4 * (n % NF)
    if n < 64:
        t, s = divmod(n, 8)
        return mfma(S + 16 * t, f, Q + 4 * s, s == 0)
    m = n - 64
    kap, dt = divmod(m, 4)
    return mfma(O + 16 * dt, f, S + 8 * kap, kap == 0)


def max_ops(t):
    ops = []
    b = S + 16 * t
    for k in range(8):
        acc = MA if k % 2 == 0 else MB
        if t == 0 and k < 2:
            ops.append(valu("v_max_f32", acc, b + 2 * k, b + 2 * k + 1))
        else:
            ops.append(valu("v_max3_f32", acc, acc, b + 2 * k, b + 2 * k + 1))
    return ops


def p_ops(kap):
    a = S + 8 * kap
    f = lambda i: valu("v_fma_f32", a + i, a + i, f"s{S_C}", NMC)
    e = lambda i: trans("v_exp_f32", a + i, a + i)
    ad = lambda i: valu("v_add_f32", L0 + (i & 1), L0 + (i & 1), a + i)
    c = lambda i: valu("v_cvt_pk_bf16_f32", a + i, a + 2 * i, a + 2 * i + 1)
    return [f(0), f(1), e(0), f(2), e(1), f(3), e(2),
            ad(0), f(4), e(3), ad(1), f(5), e(4), ad(2),
            c(0), f(6), e(5), ad(3), f(7), e(6), ad(4),
            c(1), e(7), ad(5), ad(6), c(2), ad(7), c(3)]


def prologue(p):
    P = []
    A = P.append
    A(salu(f"s_cmp_ge_u32 s2, {p['NWG']}"))
    A(Ins("s_cbranch_scc1 L_end", "salu"))
    A(salu("s_load_dwordx8 s[36:43], s[0:1], 0"))
    A(valu("v_lshrrev_b32", 1, "6", 0))
    A(valu("v_and_b32", 2, "63", 0))
    A(Ins(f"v_readfirstlane_b32 s{S_W}, v1", "rfl", vsrc=[1], sdst=[S_W]))
    A(valu("v_and_b32", 3, "15", 2))
    A(valu("v_lshrrev_b32", 4, "5", 2))
    A(valu("v_and_b32", 5, "31", 2))
    A(valu("v_lshrrev_b32", 6, "4", 2))
    A(valu("v_xor_b32", 7, 4, 3))
    A(valu("v_lshlrev_b32", 7, "4", 7))
    A(valu("v_lshl_or_b32", 7, 5, "8", 7))
    A(valu("v_or_b32", KA, "0x10000", 7))
    for s in range(1, 8):
        A(valu("v_xor_b32", KA + s, str(s << 5), KA))
    A(valu("v_bfe_u32", 8, 2, "2", "2"))
    A(valu("v_lshl_add_u32", 9, 4, "2", 8))
    A(valu("v_lshlrev_b32", 9, "8", 9))
    A(valu("v_lshl_or_b32", 9, 8, "6", 9))
    A(valu("v_bfe_u32", 10, 2, "4", "1"))
    A(valu("v_lshl_or_b32", 9, 10, "5", 9))
    A(valu("v_and_b32", 10, "1", 2))
    A(valu("v_lshl_or_b32", 9, 10, "4", 9))
    A(valu("v_bfe_u32", 10, 2, "1", "1"))
    A(valu("v_lshl_or_b32", VA, 10, "3", 9))
    for dt in range(1, 4):
        A(valu("v_xor_b32", VA + dt, str(dt << 6), VA))
    A(salu(f"s_lshl_b32 s{S_HP}, s{S_W}, 11"))
    A(salu(f"s_add_u32 s{S_HQ}, s{S_HP}, 0x10000"))
    A(salu(f"s_lshl_b32 s{S_W16}, s{S_W}, 14"))
    A(salu(f"s_lshl_b32 s34, s{S_W}, 13"))
    A(salu(f"s_sub_u32 s{S_QD}, s34, 0x10000"))
    A(salu(f"s_and_b32 s35, s{S_W}, 1"))
    A(salu(f"s_lshl_b32 s35, s35, 3"))
    A(salu(f"s_lshl_b32 s44, s{S_W}, 12"))
    A(salu(f"s_add_u32 s44, s44, 0x20000"))
    A(valu("v_or_b32", 8, "s35", 6))
    A(valu("v_xor_b32", 8, 8, 3))
    A(valu("v_lshlrev_b32", 8, "4", 8))
    A(valu("v_lshl_or_b32", 8, 6, "8", 8))
    A(valu("v_add_u32", DKQ0, f"s{S_HP}", 8))
    A(valu("v_xor_b32", DKQ1, "64", DKQ0))
    A(valu("v_lshlrev_b32", 8, "2", 6))
    A(valu("v_xor_b32", 8, 8, 3))
    A(valu("v_lshlrev_b32", 8, "4", 8))
    A(valu("v_lshl_or_b32", 8, 6, "8", 8))
    A(valu("v_add_u32", DV, f"s{S_HP}", 8))
    A(valu("v_lshrrev_b32", 8, "3", 2))
    A(valu("v_and_b32", 9, "7", 2))
    A(valu("v_xor_b32", 10, 8, 9))
    A(valu("v_lshlrev_b32", 10, "4", 10))
    A(valu("v_lshl_or_b32", 10, 8, "8", 10))
    A(valu("v_add_u32", STO, "s34", 10))
    A(valu("v_xor_b32", 10, 4, 9))
    A(valu("v_lshlrev_b32", 10, "4", 10))
    A(valu("v_lshl_or_b32", 10, 5, "7", 10))
    A(valu("v_add_u32", STW, "s44", 10))
    A(valu("v_lshlrev_b32", 10, "4", 2))
    A(valu("v_add_u32", STR, "s44", 10))
    c = (128 ** -0.5) * math.log2(math.e)
    A(salu(f"s_mov_b32 s{S_C}, {f32hex(c)}"))
    A(salu(f"s_mov_b32 s{S_NC}, {f32hex(-c)}"))
    A(salu(f"s_mov_b32 s{S_SZ}, {TENSOR_BYTES}"))
    A(salu(f"s_lshl_b32 s{S_CUR}, s2, 16"))
    A(salu(f"s_add_u32 s{S_NXT}, s{S_CUR}, {p['NWG'] * HEAD}"))
    A(salu(f"s_mov_b32 s{S_IT}, 0"))
    A(salu("s_waitcnt lgkmcnt(0)"))
    for k, srd in enumerate((SRD_Q, SRD_K, SRD_V, SRD_O)):
        A(salu(f"s_mov_b32 s{srd}, s{36 + 2 * k}"))
        A(salu(f"s_and_b32 s{srd + 1}, s{37 + 2 * k}, 0xffff"))
        A(salu(f"s_mov_b32 s{srd + 2}, s{S_SZ}"))
        A(salu(f"s_mov_b32 s{srd + 3}, 0x00020000"))
    A(salu("s_mov_b32 s48, s42"))
    A(salu("s_and_b32 s49, s43, 0xffff"))
    A(salu("s_mov_b32 s50, 0"))
    A(salu("s_mov_b32 s51, 0x00020000"))
    for tensor, j in (("Q", 0), ("Q", 1), ("Q", 2), ("Q", 3), ("K", 0), ("K", 1), ("K", 2)):
        for it in dma_tile(p, tensor, j, False, tag=(tensor, j)):
            P.extend(it)
    for n in range(8):
        A(vstore(0, STO, 48, "0", 0, tag="ST"))
    return P


def epilogue(p):
    E = []
    A = E.append
    A(valu("v_add_f32", L0, L0, L1))
    A(valu("v_mov_b32", T0, L0))
    A(Ins(f"v_permlane32_swap_b32 v{T0}, v{L0}", "perm", vdst=[T0, L0], vsrc=[T0, L0]))
    A(valu("v_add_f32", L0, L0, T0))
    A(trans("v_rcp_f32", INV, L0))
    for k in range(4):
        if k == 0:
            A(valu("v_mov_b32", T0, STW))
        else:
            A(valu("v_xor_b32", T0 + k, str((2 * k) << 4), STW))
    PK = S
    for hf in range(2):
        for dd in range(2):
            dt = 2 * hf + dd
            for gp in range(2):
                o = O + 16 * dt + 8 * gp
                d = PK + 4 * (2 * dt + gp)
                if p["PKMUL"]:
                    for i in range(4):
                        A(valu("v_pk_mul_f32", o + 2 * i, (o + 2 * i, 2), (INV, 2), dn=2,
                               mods="op_sel_hi:[1,0]"))
                else:
                    for i in range(8):
                        A(valu("v_mul_f32", o + i, o + i, INV))
                for i in range(4):
                    A(valu("v_cvt_pk_bf16_f32", d + i, o + 2 * i, o + 2 * i + 1))
                A(ds_write("ds_write_b128", T0 + 2 * dd + gp, d, 4, 0))
        for n in range(4):
            A(ds_read("ds_read_b128", S + 32 + 16 * hf + 4 * n, 4, STR, n * 1024))
        for n in range(4):
            so = f"s{S_CUR}" if n < 2 else f"s{S_CUR2}"
            A(vstore(S + 32 + 16 * hf + 4 * n, STO, SRD_O, so, (n & 1) * 2048 + hf * 128,
                     p["STFLAGS"], tag="ST"))
    return E


def body(p):
    B = []
    A = B.append
    LA, XB = p["LA"], p["XB"]
    comp = p["COMPUTE"]
    A(label("L_loop"))
    A(waitvm([("K", 0)], lgkm0=True))
    A(barrier())
    q = []
    for it in dma_tile(p, "K", 3, False, tag=("K", 3)):
        B.extend(it)
    A(salu(f"s_cmp_eq_u32 s{S_IT}, 7"))
    A(salu(f"s_cselect_b32 s{SRD_Q + 2}, 0, s{S_SZ}"))
    A(salu(f"s_cselect_b32 s{SRD_K + 2}, 0, s{S_SZ}"))
    A(salu(f"s_add_u32 s{S_CUR2}, s{S_CUR}, 4096"))
    issued = 0
    for s in range(8):
        A(valu("v_add_u32", T0 + s, f"s{S_QD}", KA + s))
    for s in range(8):
        A(ds_read("ds_read_b128", Q + 4 * s, 4, T0 + s, 0))
        if issued < LA:
            B.extend(frag_read(issued))
            issued += 1
    visible = 16
    fill = []
    after_barrier = {
        1: [("V", 0, 0), ("V", 1, 0), ("V", 2, 0), ("V", 3, 0), ("Q", 0, 1)],
        2: [("Q", 1, 1)], 3: [("Q", 2, 1)], 4: [("Q", 3, 1)],
        5: [("K", 0, 1)], 6: [("K", 1, 1)], 7: [("K", 2, 1)],
    }
    needs = {1: ("K", 1), 2: ("K", 2), 3: ("K", 3), 4: ("V", 0), 5: ("V", 1), 6: ("V", 2), 7: ("V", 3)}
    for n in range(128):
        if n == 64:
            if comp:
                B.extend(fill)
                fill = []
                B.extend(max_ops(7))
                A(valu("v_max_f32", MA, MA, MB))
                A(valu("v_mov_b32", T0, MA))
                A(valu("v_mov_b32", L0, "0"))
                A(valu("v_mov_b32", L1, "0"))
                A(Ins(f"v_permlane32_swap_b32 v{T0}, v{MA}", "perm", vdst=[T0, MA], vsrc=[T0, MA]))
                A(valu("v_max_f32", MA, MA, T0))
                A(valu("v_mul_f32", NMC, f"s{S_NC}", MA))
                B.extend(p_ops(0))
        if (n + XB) % 16 == 0 and n + XB < 128:
            j = (n + XB) // 16
            A(waitvm([needs[j]], lgkm0=True))
            A(barrier())
            visible = 16 * (j + 1)
            for (t_, jj, nx) in after_barrier[j]:
                q += dma_tile(p, t_, jj, nx, tag=(t_, jj))
        while issued <= min(n + LA, visible - 1, 127):
            B.extend(frag_read(issued))
            issued += 1
        if comp:
            A(slot_mfma(n))
        else:
            A(valu("v_mov_b32", T0, F + 4 * (n % NF)))
        if q:
            B.extend(q.pop(0))
        if comp:
            if n < 64:
                t, s = divmod(n, 8)
                if t >= 1 and s == 3:
                    fill += max_ops(t - 1)
                if s >= 4:
                    for _ in range(2):
                        if fill:
                            A(fill.pop(0))
            else:
                kap, dt = divmod(n - 64, 4)
                if kap < 15:
                    ops = p_ops(kap + 1)
                    B.extend(ops[7 * dt:7 * dt + 7])
    assert not q and not fill
    if comp:
        B.extend(epilogue(p))
    else:
        for hf in range(2):
            for n in range(4):
                so = f"s{S_CUR}" if n < 2 else f"s{S_CUR2}"
                A(vstore(S + 32 + 16 * hf + 4 * n, STO, SRD_O, so, (n & 1) * 2048 + hf * 128,
                         p["STFLAGS"], tag="ST"))
    for s in range(8):
        A(valu("v_xor_b32", KA + s, "0x10000", KA + s))
    for d in range(4):
        A(valu("v_xor_b32", VA + d, "0x10000", VA + d))
    A(salu(f"s_xor_b32 s{S_HP}, s{S_HP}, 0x10000"))
    A(salu(f"s_xor_b32 s{S_HQ}, s{S_HQ}, 0x10000"))
    A(salu(f"s_sub_u32 s{S_QD}, s{S_W16}, s{S_QD}"))
    A(salu(f"s_mov_b32 s{S_CUR}, s{S_NXT}"))
    A(salu(f"s_add_u32 s{S_NXT}, s{S_NXT}, {p['NWG'] * HEAD}"))
    A(salu(f"s_add_u32 s{S_IT}, s{S_IT}, 1"))
    A(salu(f"s_cmp_lt_u32 s{S_IT}, {2048 // p['NWG']}"))
    A(Ins("s_cbranch_scc1 L_loop", "branch", tag="L_loop"))
    return B


def generate(**kw):
    p = dict(DEFAULTS)
    p.update(kw)
    ins = prologue(p) + body(p)
    ins.append(waitvm("ALL"))
    ins.append(label("L_end"))
    ins.append(salu("s_endpgm"))
    ins = insert_lgkm_waits_loop(ins)
    ins = resolve_vm_waits(ins, "L_loop")
    ins, n = fix_hazards(ins, "L_loop", verbose=p.get("verbose", False))
    hdr = open("cdna_kernels/" + NAME + ".s.ref").read().split("\n")
    lines = []
    for l in hdr:
        if l.startswith("; @launch"):
            lines.append(f"; @launch grid=({p['NWG']},1,1) block=(512,1,1) lds=163840")
        elif l.startswith(";"):
            lines.append(l)
        else:
            break
    lines += [
        '.amdgcn_target "amdgcn-amd-amdhsa--gfx950"',
        ".text",
        f".globl {NAME}_kernel",
        ".p2align 8",
        f".type {NAME}_kernel,@function",
        f"{NAME}_kernel:",
        render(ins),
        '.section .rodata,"a"',
        ".p2align 6",
        f".amdhsa_kernel {NAME}_kernel",
        "  .amdhsa_next_free_vgpr 256",
        "  .amdhsa_next_free_sgpr 64",
        "  .amdhsa_accum_offset 256",
        "  .amdhsa_group_segment_fixed_size 0",
        "  .amdhsa_kernarg_size 48",
        "  .amdhsa_user_sgpr_count 2",
        "  .amdhsa_user_sgpr_kernarg_segment_ptr 1",
        "  .amdhsa_system_sgpr_workgroup_id_x 1",
        ".end_amdhsa_kernel",
        "",
    ]
    return "\n".join(lines), ins


def insert_lgkm_waits_loop(ins):
    return insert_lgkm_waits(ins)


if __name__ == "__main__":
    kw = {}
    out = "cdna_kernels/" + NAME + ".s"
    for a in sys.argv[1:]:
        if a.startswith("out="):
            out = a[4:]
            continue
        k, v = a.split("=", 1)
        try:
            v = int(v)
        except ValueError:
            pass
        kw[k] = v
    text, ins = generate(**kw)
    open(out, "w").write(text)
    print(f"wrote {out}: {len(ins)} instructions")
    for i in ins:
        if i.kind == "waitvm":
            print("  waitvm", i.tag, getattr(i, "allvals", None), "->", i.text)
```
